```python
import torch

def _softmax(x, axis=-1):
    return torch.softmax(x, dim=axis)
def _gelu(x):
    return torch.nn.functional.gelu(x, approximate="tanh")
def _silu(x):
    return torch.nn.functional.silu(x)
def _sigmoid(x):
    return torch.sigmoid(x)
def _layernorm(x, axis=-1, eps=1e-5):
    m = x.mean(dim=axis, keepdim=True)
    v = x.var(dim=axis, keepdim=True, unbiased=False)
    return (x - m) / torch.sqrt(v + eps)
def _scatter_add(tgt, idx, src, axis=0):
    return tgt.clone().index_add_(axis, idx, src)
def _segment_sum(src, seg, n):
    out = torch.zeros((n,) + src.shape[1:], dtype=src.dtype)
    return out.index_add_(0, seg, src)
def _pad(x, pw):
    flat = tuple(v for pair in reversed(pw) for v in pair)
    return torch.nn.functional.pad(x, flat)

kernel_name = 'standalone__attention_interact_autoint__recsys'

def setup_inputs():

    _w = (lambda a: (lambda t: t.to(torch.bfloat16) if t.is_floating_point() else t)(torch.as_tensor(a)))
    B, F = 4096, 100
    D = max(2, (16 // 2) * 2)
    H = 2
    Dh = D // H
    return {
        "e": _w((lambda *s: torch.randn(*s, dtype=torch.bfloat16) * 0.05)(B, F, D).to(float)),
        "wq": _w((lambda *s: torch.randn(*s, dtype=torch.bfloat16) * 6.4)(H, D, Dh).to(float)),
        "wk": _w((lambda *s: torch.randn(*s, dtype=torch.bfloat16) * 6.4)(H, D, Dh).to(float)),
        "wv": _w((lambda *s: torch.randn(*s, dtype=torch.bfloat16) * 0.05)(H, D, Dh).to(float)),
        "wres": _w((lambda *s: torch.randn(*s, dtype=torch.bfloat16) * 0.05)(D, D).to(float)),
    }

def reference(e, wq, wk, wv, wres):
    H, D, Dh = wq.shape[0], wq.shape[1], wq.shape[2]
    B, F = e.shape[0], e.shape[1]
    q = torch.einsum('bfd,hdk->bhfk', e, wq)
    k = torch.einsum('bfd,hdk->bhfk', e, wk)
    v = torch.einsum('bfd,hdk->bhfk', e, wv)
    scale = float(Dh) ** -0.5
    scores = torch.einsum('bhfk,bhgk->bhfg', q, k) * scale
    attn = _softmax(scores, axis=-1)
    attn = (lambda x, dt: x.to(dt))(attn, v.dtype)
    ctx = torch.einsum('bhfg,bhgk->bhfk', attn, v)
    ctx = (lambda x, *d: x.permute(*d))(ctx, 0, 2, 1, 3).reshape(B, F, H * Dh)
    res = torch.einsum('bfd,de->bfe', e, wres)
    out = ctx + res
    mask = (lambda x, dt: x.to(dt))(out > 0, out.dtype)
    return out * mask
```

```python
import re, copy

def _regs(tok):
    tok = tok.strip()
    m = re.fullmatch(r'(-?)(?:abs\()?([vsa])(\d+)\)?', tok)
    if m:
        return m.group(2), {int(m.group(3))}
    m = re.fullmatch(r'([vsa])\[(\d+):(\d+)\]', tok)
    if m:
        return m.group(1), set(range(int(m.group(2)), int(m.group(3)) + 1))
    if tok == 'vcc':
        return 's', {'vcc'}
    if tok == 'exec':
        return 's', {'exec'}
    return None

TRANS = ('v_exp_f32', 'v_rcp_f32', 'v_log_f32', 'v_rsq_f32', 'v_sqrt_f32', 'v_exp_f16', 'v_rcp_iflag_f32')

class Rec:
    __slots__ = ('kind', 'vr', 'vw', 'sr', 'sw', 'D', 'A', 'B', 'C', 'age', 'text', 'storedata')

def parse(text):
    t = text.split(';')[0].strip()
    r = Rec()
    r.text = t
    r.vr, r.vw, r.sr, r.sw = set(), set(), set(), set()
    r.D = r.A = r.B = r.C = None
    r.storedata = set()
    parts = t.split(None, 1)
    mn = parts[0]
    ops = []
    if len(parts) > 1:
        cur = ''
        depth = 0
        for ch in parts[1]:
            if ch == '[': depth += 1
            if ch == ']': depth -= 1
            if ch == ',' and depth == 0:
                ops.append(cur.strip()); cur = ''
            else:
                cur += ch
        if cur.strip(): ops.append(cur.strip())
    toks = []
    for o in ops:
        toks.append(o.split()[0] if o.split() else o)
    def rd(tok):
        x = _regs(tok)
        if x:
            (r.vr if x[0] == 'v' else r.sr).update(x[1])
    def wr(tok):
        x = _regs(tok)
        if x:
            (r.vw if x[0] == 'v' else r.sw).update(x[1])
    if mn.startswith('v_mfma'):
        r.kind = 'mfma'
        r.D = _regs(toks[0])[1]; r.A = _regs(toks[1])[1]; r.B = _regs(toks[2])[1]
        c = _regs(toks[3])
        r.C = c[1] if c and c[0] == 'v' else set()
        r.vw |= r.D; r.vr |= r.A | r.B | r.C
    elif mn.startswith('v_permlane'):
        r.kind = 'perm'
        for tk in toks[:2]:
            rd(tk); wr(tk)
    elif mn.startswith('v_'):
        r.kind = 'trans' if mn in TRANS else 'valu'
        wr(toks[0])
        for tk in toks[1:]:
            rd(tk)
        if mn.startswith('v_cndmask_b32_e32') or (mn == 'v_cndmask_b32' and len(toks) == 3):
            r.sr.add('vcc')
        if mn in ('v_fmac_f32', 'v_fmac_f32_e32'):
            rd(toks[0])
        if mn.startswith(('v_readfirstlane', 'v_readlane')):
            r.kind = 'readlane'
    elif mn.startswith(('buffer_load', 'global_load')):
        r.kind = 'vmem'
        wr(toks[0])
        for tk in toks[1:]:
            rd(tk)
    elif mn.startswith(('buffer_store', 'global_store')):
        r.kind = 'vmem'
        for tk in toks:
            rd(tk)
        if 'x4' in mn or 'x3' in mn:
            x = _regs(toks[0]) if mn.startswith('buffer') else _regs(toks[1])
            r.storedata = x[1]
    elif mn.startswith('ds_read'):
        r.kind = 'ds'
        wr(toks[0])
        for tk in toks[1:]:
            rd(tk)
    elif mn.startswith('ds_write'):
        r.kind = 'ds'
        for tk in toks:
            rd(tk)
    else:
        r.kind = 'salu'
    return r

def nop_states(text):
    t = text.split(';')[0].strip()
    m = re.fullmatch(r's_nop\s+(\d+)', t)
    if m:
        return int(m.group(1)) + 1
    return 1

class Asm:
    def __init__(self):
        self.lines = []
        self.hist = []
        self.nops_inserted = 0

    def need(self, I):
        need = 0
        for R, d in self.hist:
            n = 0
            if R.kind in ('valu', 'trans', 'perm', 'readlane'):
                if I.kind == 'mfma' and (R.vw & I.vr): n = max(n, 2)
                if I.kind == 'perm' and (R.vw & I.vr): n = max(n, 2)
                if R.kind == 'trans' and I.kind in ('valu', 'perm', 'readlane') and (R.vw & I.vr): n = max(n, 1)
                if I.kind == 'readlane' and (R.vw & I.vr): n = max(n, 1)
                if (R.sw & I.sr):
                    if I.kind in ('valu', 'trans', 'perm'): n = max(n, 2)
                    if I.kind == 'readlane': n = max(n, 4)
                    if I.kind == 'vmem': n = max(n, 5)
            if R.kind == 'mfma':
                D = R.D
                if I.kind == 'mfma':
                    if I.C and (I.C & D):
                        if I.C == D: pass
                        else: n = max(n, 10)
                    if (I.A | I.B) & D: n = max(n, 12)
                elif I.kind in ('valu', 'trans', 'perm', 'readlane'):
                    if D & (I.vr | I.vw): n = max(n, 12)
                    if R.C & I.vw: n = max(n, 7)
                elif I.kind in ('vmem', 'ds'):
                    if D & (I.vr | I.vw): n = max(n, 12)
            if R.storedata and I.kind in ('valu', 'trans', 'perm') and (R.storedata & I.vw):
                n = max(n, 2)
            if n - d > need:
                need = n - d
        return need

    def _age(self, states):
        nh = []
        for R, d in self.hist:
            d += states
            if d < 24:
                nh.append((R, d))
        self.hist = nh

    def raw(self, text):
        self.lines.append(text)

    def ins(self, text):
        I = parse(text)
        if I.kind != 'salu' or True:
            n = self.need(I)
            while n > 0:
                k = min(n, 16)
                self.lines.append(f"    s_nop {k-1}")
                self._age(k)
                self.nops_inserted += k
                n -= k
        self.lines.append("    " + text)
        st = nop_states(text)
        self._age(st)
        self.hist.append((I, 0))
        return I

    def many(self, texts):
        for t in texts:
            self.ins(t)

    def flush_hist(self):
        self.hist = []

    def text(self):
        return "\n".join(self.lines) + "\n"
```

```python
import sys, struct
from asmgen import Asm

NAME = "standalone__attention_interact_autoint__recsys"
G = 8
NT = 50
NWAVES = 4
NWG = 4096 // G
KOFF = 0; KB = 4096
VROW = 232; VB = 16 * VROW
VOFF = G * KB
COFF = VOFF + G * VB
LDS = ((COFF + VROW + 255) // 256) * 256
CSCALE = 1.4426950408889634 / (8 ** 0.5)
def f32bits(x): return struct.unpack("<I", struct.pack("<f", x))[0]

a = Asm()
I = a.ins

vTID = 0
vL, vI, vHF, vLaneK, vLaneK3, vNHF, vLaneV, vIsLow16, vIsLow8, vHF16, vHF8 = range(1, 12)
vWQR = 12
vE = 16
vDQ = 20
vQop = 36
vKf = 40
vXA = 56
vXB = 72
vC = 88
vO = 104
vP = 120
vVb = 128
vEoffN, vOoffN, vQmaskN, vOoff, vQmask = 144, 145, 146, 147, 148
vM0, vM1, vT0, vT1, vT2, vT3, vKaddr, vVaddr, vInv = range(150, 159)
vWK = 160
vWV = 164
vTmp = 168
NVGPR = 184

sKARG = 48
sSRDe, sSRDo, sSRDq, sSRDk, sSRDv, sSRDr = 4, 8, 12, 16, 20, 24
sWGB, sWave, sCt = 28, 29, 30
sP0, sPL, sB0, sB1, sK1, sDK, sV1, sDV, sT0, sT1 = range(31, 41)
sMlow16 = 42
sHm = 44
sHmN = 46
sM100 = 60
sT2, sT3 = 61, 62

hdr = f"""; Kernarg layout for this problem (64 bytes, ptrs only, base s[0:1]):
; @launch grid=({NWG},1,1) block=({64*NWAVES},1,1) lds={LDS}
.amdgcn_target "amdgcn-amd-amdhsa--gfx950"
.text
.globl {NAME}_kernel
.p2align 8
.type {NAME}_kernel,@function
{NAME}_kernel:"""
a.raw(hdr)

def srd(s, ptr, nbytes):
    I(f"s_mov_b32 s{s}, s{ptr}")
    I(f"s_and_b32 s{s+1}, s{ptr+1}, 0xffff")
    I(f"s_mov_b32 s{s+2}, {nbytes}")
    I(f"s_mov_b32 s{s+3}, 0x00020000")

I(f"s_cmp_ge_u32 s2, {NWG}")
I("s_cbranch_scc1 L_end")
I(f"s_load_dwordx8 s[{sKARG}:{sKARG+7}], s[0:1], 0")
I(f"s_load_dwordx4 s[{sKARG+8}:{sKARG+11}], s[0:1], 32")
I(f"v_and_b32 v{vL}, 63, v{vTID}")
I(f"v_and_b32 v{vI}, 31, v{vTID}")
I(f"v_bfe_u32 v{vHF}, v{vTID}, 5, 1")
I(f"v_lshrrev_b32 v{vT0}, 6, v{vTID}")
I("s_nop 0")
I(f"v_readfirstlane_b32 s{sWave}, v{vT0}")
I(f"v_lshlrev_b32 v{vHF16}, 4, v{vHF}")
I(f"v_lshlrev_b32 v{vHF8}, 3, v{vHF}")
I(f"v_lshl_add_u32 v{vLaneK}, v{vI}, 5, v{vHF16}")
I(f"v_and_b32 v{vT0}, 3, v{vI}")
I(f"v_lshl_add_u32 v{vLaneK3}, v{vT0}, 5, v{vHF16}")
I(f"v_sub_u32 v{vNHF}, 1, v{vHF}")
I(f"v_cmp_gt_u32 vcc, 16, v{vI}")
I(f"v_cndmask_b32_e64 v{vIsLow16}, 0, 1, vcc")
I(f"v_cmp_gt_u32 vcc, 8, v{vI}")
I(f"v_cndmask_b32_e64 v{vIsLow8}, 0, 1, vcc")
I(f"v_mul_u32_u24 v{vT0}, {VROW}, v{vI}")
I(f"v_mov_b32 v{vT1}, {COFF}")
I(f"v_cmp_gt_u32 vcc, 16, v{vI}")
I(f"v_cndmask_b32_e64 v{vT0}, v{vT1}, v{vT0}, vcc")
I(f"v_add_u32 v{vLaneV}, v{vT0}, v{vHF8}")
I(f"s_mov_b32 s{sMlow16}, 0x0000ffff")
I(f"s_mov_b32 s{sMlow16+1}, 0x0000ffff")
I(f"s_mov_b32 s{sM100}, -100")
I(f"s_mul_i32 s{sWGB}, s2, {G*3200}")
I("s_waitcnt lgkmcnt(0)")
srd(sSRDe, sKARG + 0, 4096 * 3200)
srd(sSRDq, sKARG + 2, 512)
srd(sSRDk, sKARG + 4, 512)
srd(sSRDv, sKARG + 6, 512)
srd(sSRDr, sKARG + 8, 512)
srd(sSRDo, sKARG + 10, 4096 * 3200)

def load8(tmp, srdreg, vbase, vstride):
    for m in range(8):
        I(f"v_mad_u32_u24 v{tmp+m}, v{vstride}, {m}, v{vbase}")
        I(f"buffer_load_ushort v{tmp+m}, v{tmp+m}, s[{srdreg}:{srdreg+3}], 0 offen")

vBase, vStride, vScale, vBase2, vStride2, vScale2 = vT0, vT1, vT2, vT3, vM0, vM1
I(f"v_bfe_u32 v{vBase}, v{vI}, 2, 1")
I(f"v_lshlrev_b32 v{vBase}, 8, v{vBase}")
I(f"v_and_b32 v{vStride}, 3, v{vI}")
I(f"v_lshrrev_b32 v{vInv}, 3, v{vI}")
I(f"v_lshl_add_u32 v{vStride}, v{vInv}, 2, v{vStride}")
I(f"v_lshl_add_u32 v{vBase}, v{vStride}, 1, v{vBase}")
I(f"v_lshl_add_u32 v{vBase}, v{vHF}, 7, v{vBase}")
I(f"v_mul_u32_u24 v{vBase}, v{vBase}, v{vIsLow16}")
I(f"v_mov_b32 v{vStride}, 16")
I(f"v_cvt_f32_u32 v{vScale}, v{vIsLow16}")
I(f"v_mul_f32 v{vScale}, {f32bits(CSCALE):#x}, v{vScale}")
I(f"v_bfe_u32 v{vBase2}, v{vI}, 3, 1")
I(f"v_lshlrev_b32 v{vBase2}, 3, v{vBase2}")
I(f"v_and_b32 v{vStride2}, 7, v{vI}")
I(f"v_add_u32 v{vBase2}, v{vBase2}, v{vStride2}")
I(f"v_lshlrev_b32 v{vBase2}, 1, v{vBase2}")
I(f"v_lshl_add_u32 v{vBase2}, v{vHF}, 8, v{vBase2}")
I(f"v_mov_b32 v{vStride2}, 32")
I(f"v_sub_u32 v{vScale2}, 1, v{vIsLow16}")
I(f"v_cvt_f32_u32 v{vScale2}, v{vScale2}")
load8(vTmp, sSRDq, vBase, vStride)
load8(vTmp + 8, sSRDr, vBase2, vStride2)
I("s_waitcnt vmcnt(0)")
for m in range(8):
    I(f"v_lshlrev_b32 v{vTmp+m}, 16, v{vTmp+m}")
    I(f"v_lshlrev_b32 v{vTmp+8+m}, 16, v{vTmp+8+m}")
    I(f"v_mul_f32 v{vTmp+m}, v{vScale}, v{vTmp+m}")
    I(f"v_fmac_f32 v{vTmp+m}, v{vScale2}, v{vTmp+8+m}")
for q in range(4):
    I(f"v_cvt_pk_bf16_f32 v{vWQR+q}, v{vTmp+2*q}, v{vTmp+2*q+1}")
I(f"v_cvt_f32_u32 v{vScale}, v{vIsLow16}")
load8(vTmp, sSRDk, vBase, vStride)
I(f"v_bfe_u32 v{vBase2}, v{vI}, 3, 1")
I(f"v_lshlrev_b32 v{vBase2}, 8, v{vBase2}")
I(f"v_and_b32 v{vStride2}, 7, v{vI}")
I(f"v_lshl_add_u32 v{vBase2}, v{vStride2}, 1, v{vBase2}")
I(f"v_lshl_add_u32 v{vBase2}, v{vHF}, 7, v{vBase2}")
I(f"v_mul_u32_u24 v{vBase2}, v{vBase2}, v{vIsLow16}")
load8(vTmp + 8, sSRDv, vBase2, vStride)
I("s_waitcnt vmcnt(0)")
for m in range(16):
    I(f"v_lshlrev_b32 v{vTmp+m}, 16, v{vTmp+m}")
    I(f"v_mul_f32 v{vTmp+m}, v{vScale}, v{vTmp+m}")
for q in range(4):
    I(f"v_cvt_pk_bf16_f32 v{vWK+q}, v{vTmp+2*q}, v{vTmp+2*q+1}")
    I(f"v_cvt_pk_bf16_f32 v{vWV+q}, v{vTmp+8+2*q}, v{vTmp+8+2*q+1}")

EA = 16
DK = [48, 64]; DV = [80, 96]
vKw, vVw = 112, 113
KP = 116
VP = 120
NB = G // NWAVES
I(f"s_mul_i32 s{sT0}, s{sWave}, {NB*3200}")
I(f"s_add_u32 s{sT0}, s{sT0}, s{sWGB}")
for n in range(NB):
    for t in range(4):
        lane = vLaneK3 if t == 3 else vLaneK
        I(f"buffer_load_dwordx4 v[{EA+16*n+4*t}:{EA+16*n+4*t+3}], v{lane}, s[{sSRDe}:{sSRDe+3}], s{sT0} offen offset:{t*1024}")
    I(f"s_add_u32 s{sT0}, s{sT0}, 3200")
I(f"s_cmp_lg_u32 s{sWave}, 0")
I("s_cbranch_scc1 L_noconst")
I(f"v_mov_b32 v{vT0}, 0x3f803f80")
I(f"v_cmp_gt_u32 vcc, 50, v{vL}")
I(f"v_cndmask_b32_e64 v{vT0}, 0, v{vT0}, vcc")
I(f"v_lshlrev_b32 v{vT1}, 2, v{vL}")
I(f"v_cmp_gt_u32 vcc, 58, v{vL}")
I("s_and_saveexec_b64 s[62:63], vcc")
I(f"ds_write_b32 v{vT1}, v{vT0} offset:{COFF}")
I("s_mov_b64 exec, s[62:63]")
a.raw("L_noconst:")
a.flush_hist()
I(f"s_mul_i32 s{sT1}, s{sWave}, {NB*KB}")
I(f"s_mul_i32 s{sT2}, s{sWave}, {NB*VB}")
for n in range(NB):
    I(f"v_add_u32 v{vKw}, s{sT1}, v{vLaneK}")
    I(f"s_add_u32 s{sT3}, s{sT2}, {VOFF}")
    I(f"v_add_u32 v{vVw}, s{sT3}, v{vLaneV}")
    for t in range(4):
        idx = n * 4 + t
        e = EA + 4 * idx
        dk = DK[idx & 1]; dv = DV[idx & 1]
        I(f"s_waitcnt vmcnt({NB*4-1-idx})")
        I(f"v_mfma_f32_32x32x16_bf16 v[{dk}:{dk+15}], v[{vWK}:{vWK+3}], v[{e}:{e+3}], 0")
        I(f"v_mfma_f32_32x32x16_bf16 v[{dv}:{dv+15}], v[{e}:{e+3}], v[{vWV}:{vWV+3}], 0")
        for q in range(4):
            I(f"v_cvt_pk_bf16_f32 v{KP+q}, v{dk+2*q}, v{dk+2*q+1}")
        I(f"ds_write_b128 v{vKw}, v[{KP}:{KP+3}] offset:{t*1024}")
        if t < 3:
            for q in range(8):
                I(f"v_cvt_pk_bf16_f32 v{VP+q}, v{dv+2*q}, v{dv+2*q+1}")
            I(f"s_mov_b64 exec, s[{sMlow16}:{sMlow16+1}]")
            for q in range(4):
                I(f"ds_write_b64 v{vVw}, v[{VP+2*q}:{VP+2*q+1}] offset:{64*t+16*q}")
            I("s_mov_b64 exec, -1")
        else:
            for q in range(2):
                I(f"v_cvt_pk_bf16_f32 v{VP+q}, v{dv+2*q}, v{dv+2*q+1}")
            I(f"v_add_u32 v{vT0}, -1, v{vHF}")
            I(f"v_and_b32 v{VP}, v{VP}, v{vT0}")
            I(f"v_and_b32 v{VP+1}, v{VP+1}, v{vT0}")
            I(f"v_mov_b32 v{VP+2}, 0")
            I(f"v_mov_b32 v{VP+3}, 0")
            I(f"s_mov_b64 exec, s[{sMlow16}:{sMlow16+1}]")
            I(f"ds_write_b64 v{vVw}, v[{VP}:{VP+1}] offset:{64*t}")
            I(f"ds_write_b64 v{vVw}, v[{VP+2}:{VP+3}] offset:{64*t+16}")
            I("s_mov_b64 exec, -1")
    I(f"s_add_u32 s{sT1}, s{sT1}, {KB}")
    I(f"s_add_u32 s{sT2}, s{sT2}, {VB}")
I("s_waitcnt lgkmcnt(0)")
I("s_barrier")

def lane_info(sC):
    I(f"s_lshl_b32 s{sT0}, s{sC}, 5")
    I(f"v_add_u32 v{vT0}, s{sT0}, v{vI}")
    I(f"v_mul_u32_u24 v{vT1}, 10486, v{vT0}")
    I(f"v_lshrrev_b32 v{vT1}, 20, v{vT1}")
    I(f"v_add_u32 v{vT2}, 1, v{vT1}")
    I(f"v_lshrrev_b32 v{vT2}, 1, v{vT2}")
    I(f"v_mad_i32_i24 v{vT0}, v{vT2}, s{sM100}, v{vT0}")
    I(f"v_lshlrev_b32 v{vT0}, 5, v{vT0}")
    I(f"v_add_u32 v{vEoffN}, v{vT0}, v{vHF16}")
    I(f"v_and_b32 v{vT1}, 1, v{vT1}")
    I(f"v_lshl_add_u32 v{vT2}, v{vT1}, 4, v{vHF8}")
    I(f"v_add_u32 v{vOoffN}, v{vT0}, v{vT2}")
    I(f"v_xor_b32 v{vT2}, v{vT1}, v{vHF}")
    I(f"v_add_u32 v{vQmaskN}, -1, v{vT2}")
    I(f"v_cmp_eq_u32 s[{sHmN}:{sHmN+1}], 1, v{vT1}")

def issue_E():
    I(f"buffer_load_dwordx4 v[{vE}:{vE+3}], v{vEoffN}, s[{sSRDe}:{sSRDe+3}], s{sWGB} offen")

I(f"s_mov_b32 s{sCt}, s{sWave}")
lane_info(sCt)
issue_E()
I("s_waitcnt vmcnt(0)")
a.raw("L_tile:")

def tile_body():
    I(f"v_mov_b32 v{vOoff}, v{vOoffN}")
    I(f"v_mov_b32 v{vQmask}, v{vQmaskN}")
    I(f"s_mov_b64 s[{sHm}:{sHm+1}], s[{sHmN}:{sHmN+1}]")
    I(f"s_lshl_b32 s{sT0}, s{sCt}, 5")
    I(f"s_mul_i32 s{sP0}, s{sT0}, 10486")
    I(f"s_lshr_b32 s{sP0}, s{sP0}, 20")
    I(f"s_add_u32 s{sT0}, s{sT0}, 31")
    I(f"s_mul_i32 s{sPL}, s{sT0}, 10486")
    I(f"s_lshr_b32 s{sPL}, s{sPL}, 20")
    I(f"s_lshr_b32 s{sB1}, s{sP0}, 1")
    I(f"s_sub_u32 s{sT0}, s{sPL}, s{sP0}")
    I(f"s_and_b32 s{sT0}, s{sT0}, s{sP0}")
    I(f"s_add_u32 s{sB0}, s{sB1}, s{sT0}")
    I(f"s_mul_i32 s{sK1}, s{sB1}, {KB}")
    I(f"s_lshl_b32 s{sDK}, s{sT0}, 12")
    I(f"s_mul_i32 s{sV1}, s{sB1}, {VB}")
    I(f"s_add_u32 s{sV1}, s{sV1}, {VOFF}")
    I(f"s_mul_i32 s{sDV}, s{sT0}, {VB}")
    I("s_waitcnt vmcnt(1)")
    I(f"v_mfma_f32_32x32x16_bf16 v[{vDQ}:{vDQ+15}], v[{vWQR}:{vWQR+3}], v[{vE}:{vE+3}], 0")
    I(f"v_mad_u32_u24 v{vKaddr}, v{vNHF}, s{sDK}, v{vLaneK}")
    I(f"v_add_u32 v{vKaddr}, s{sK1}, v{vKaddr}")
    I(f"v_mad_u32_u24 v{vVaddr}, v{vIsLow8}, s{sDV}, v{vLaneV}")
    I(f"v_mad_u32_u24 v{vVaddr}, v{vIsLow16}, s{sV1}, v{vVaddr}")
    for t in range(4):
        I(f"ds_read_b128 v[{vKf+4*t}:{vKf+4*t+3}], v{vKaddr} offset:{t*1024}")
    def vload(t, buf):
        for u in range(2):
            if t == 3 and u == 1: break
            b = vVb + 8 * buf + 4 * u
            I(f"ds_read_b64 v[{b}:{b+1}], v{vVaddr} offset:{(32*t+16*u)*2}")
            I(f"ds_read_b64 v[{b+2}:{b+3}], v{vVaddr} offset:{(32*t+16*u)*2+16}")
    vload(0, 0)
    I(f"s_add_u32 s{sT3}, s{sCt}, {NWAVES}")
    lane_info(sT3)
    issue_E()
    for q in range(4):
        I(f"v_cvt_pk_bf16_f32 v{vQop+q}, v{vDQ+2*q}, v{vDQ+2*q+1}")
    for q in range(4):
        I(f"v_and_b32 v{vQop+q}, v{vQop+q}, v{vQmask}")
    X1 = [vXA, vXB, vC, vO]
    I("s_waitcnt lgkmcnt(4)")
    for t in range(4):
        I(f"v_mfma_f32_32x32x16_bf16 v[{X1[t]}:{X1[t]+15}], v[{vKf+4*t}:{vKf+4*t+3}], v[{vQop}:{vQop+3}], 0")
    vals = []
    for t in range(4):
        n = 16 if t < 3 else 4
        vals += [X1[t] + r for r in range(n)]
    accs = [vM0, vM1]
    started = [False, False]
    k = 0; ch = 0
    while k < len(vals):
        acc = accs[ch]
        if not started[ch]:
            I(f"v_max3_f32 v{acc}, v{vals[k]}, v{vals[k+1]}, v{vals[k+2]}"); k += 3; started[ch] = True
        elif k + 1 < len(vals):
            I(f"v_max3_f32 v{acc}, v{acc}, v{vals[k]}, v{vals[k+1]}"); k += 2
        else:
            I(f"v_max_f32 v{acc}, v{acc}, v{vals[k]}"); k += 1
        ch ^= 1
    I(f"v_max_f32 v{vM0}, v{vM0}, v{vM1}")
    I(f"v_mov_b32 v{vM1}, v{vM0}")
    I(f"v_permlane32_swap_b32 v{vM0}, v{vM1}")
    I(f"v_max_f32 v{vM0}, v{vM0}, v{vM1}")
    for r in range(16):
        I(f"v_mul_f32 v{vC+r}, -1.0, v{vM0}")
    XB2 = [vXA, vXB]
    I(f"v_mfma_f32_32x32x16_bf16 v[{vXA}:{vXA+15}], v[{vKf}:{vKf+3}], v[{vQop}:{vQop+3}], v[{vC}:{vC+15}]")
    I(f"v_mfma_f32_32x32x16_bf16 v[{vXB}:{vXB+15}], v[{vKf+4}:{vKf+7}], v[{vQop}:{vQop+3}], v[{vC}:{vC+15}]")
    first_pv = True
    for t in range(4):
        X = XB2[t & 1]
        nreg = 16 if t < 3 else 4
        if t < 3:
            vload(t + 1, (t + 1) & 1)
        for r in range(nreg):
            I(f"v_exp_f32 v{X+r}, v{X+r}")
        for q in range(nreg // 2):
            I(f"v_cvt_pk_bf16_f32 v{vP+q}, v{X+2*q}, v{X+2*q+1}")
        if t == 3:
            I(f"v_mov_b32 v{vP+2}, 0")
            I(f"v_mov_b32 v{vP+3}, 0")
        if t + 2 < 4:
            I(f"v_mfma_f32_32x32x16_bf16 v[{X}:{X+15}], v[{vKf+4*(t+2)}:{vKf+4*(t+2)+3}], v[{vQop}:{vQop+3}], v[{vC}:{vC+15}]")
        nxt = 0 if t == 3 else (2 if t + 1 == 3 else 4)
        I(f"s_waitcnt lgkmcnt({nxt})")
        for u in range(2):
            if t == 3 and u == 1: break
            b = vVb + 8 * (t & 1) + 4 * u
            cin = "0" if first_pv else f"v[{vO}:{vO+15}]"
            I(f"v_mfma_f32_32x32x16_bf16 v[{vO}:{vO+15}], v[{b}:{b+3}], v[{vP+4*u}:{vP+4*u+3}], {cin}")
            first_pv = False
    I(f"v_rcp_f32 v{vInv}, v{vO+8}")
    for m in range(4):
        I(f"v_cndmask_b32_e64 v{vT0+m}, v{vO+m}, v{vO+4+m}, s[{sHm}:{sHm+1}]")
    for m in range(4):
        I(f"v_cndmask_b32_e64 v{vO+m}, v{vDQ+8+m}, v{vDQ+12+m}, s[{sHm}:{sHm+1}]")
    for m in range(4):
        I(f"v_fma_f32 v{vT0+m}, v{vT0+m}, v{vInv}, v{vO+m}")
    I(f"v_cvt_pk_bf16_f32 v{vT0}, v{vT0}, v{vT1}")
    I(f"v_cvt_pk_bf16_f32 v{vT1}, v{vT2}, v{vT3}")
    I(f"v_pk_max_i16 v{vT0}, v{vT0}, 0")
    I(f"v_pk_max_i16 v{vT1}, v{vT1}, 0")
    I(f"buffer_store_dwordx2 v[{vT0}:{vT1}], v{vOoff}, s[{sSRDo}:{sSRDo+3}], s{sWGB} offen")
    I(f"s_add_u32 s{sCt}, s{sCt}, {NWAVES}")
    I(f"s_cmp_lt_u32 s{sCt}, {NT}")
    I("s_cbranch_scc1 L_tile")

start = len(a.lines)
h0 = list(a.hist)
tile_body()
tail = list(a.hist)
a.lines = a.lines[:start]
a.hist = h0 + tail
tile_body()
a.raw("L_end:")
I("s_endpgm")

tailtxt = f""".section .rodata,"a"
.p2align 6
.amdhsa_kernel {NAME}_kernel
  .amdhsa_next_free_vgpr {NVGPR}
  .amdhsa_next_free_sgpr 102
  .amdhsa_accum_offset {((NVGPR+3)//4)*4}
  .amdhsa_group_segment_fixed_size 0
  .amdhsa_kernarg_size 64
  .amdhsa_user_sgpr_count 2
  .amdhsa_user_sgpr_kernarg_segment_ptr 1
  .amdhsa_system_sgpr_workgroup_id_x 1
.end_amdhsa_kernel
"""
out = sys.argv[1] if len(sys.argv) > 1 else "cdna_kernels/" + NAME + ".s"
open(out, "w").write(a.text() + tailtxt)
print("wrote", out, "lines", len(a.lines), "LDS", LDS, "nops", a.nops_inserted)
```

```python
import re, copy

def _regs(tok):
    tok = tok.strip()
    m = re.fullmatch(r'(-?)(?:abs\()?([vsa])(\d+)\)?', tok)
    if m:
        return m.group(2), {int(m.group(3))}
    m = re.fullmatch(r'([vsa])\[(\d+):(\d+)\]', tok)
    if m:
        return m.group(1), set(range(int(m.group(2)), int(m.group(3)) + 1))
    if tok == 'vcc':
        return 's', {'vcc'}
    if tok == 'exec':
        return 's', {'exec'}
    return None

TRANS = ('v_exp_f32', 'v_rcp_f32', 'v_log_f32', 'v_rsq_f32', 'v_sqrt_f32', 'v_exp_f16', 'v_rcp_iflag_f32')

class Rec:
    __slots__ = ('kind', 'vr', 'vw', 'sr', 'sw', 'D', 'A', 'B', 'C', 'age', 'text', 'storedata')

def parse(text):
    t = text.split(';')[0].strip()
    r = Rec()
    r.text = t
    r.vr, r.vw, r.sr, r.sw = set(), set(), set(), set()
    r.D = r.A = r.B = r.C = None
    r.storedata = set()
    parts = t.split(None, 1)
    mn = parts[0]
    ops = []
    if len(parts) > 1:
        cur = ''
        depth = 0
        for ch in parts[1]:
            if ch == '[': depth += 1
            if ch == ']': depth -= 1
            if ch == ',' and depth == 0:
                ops.append(cur.strip()); cur = ''
            else:
                cur += ch
        if cur.strip(): ops.append(cur.strip())
    toks = []
    for o in ops:
        toks.append(o.split()[0] if o.split() else o)
    def rd(tok):
        x = _regs(tok)
        if x:
            (r.vr if x[0] == 'v' else r.sr).update(x[1])
    def wr(tok):
        x = _regs(tok)
        if x:
            (r.vw if x[0] == 'v' else r.sw).update(x[1])
    if mn.startswith('v_mfma'):
        r.kind = 'mfma'
        r.D = _regs(toks[0])[1]; r.A = _regs(toks[1])[1]; r.B = _regs(toks[2])[1]
        c = _regs(toks[3])
        r.C = c[1] if c and c[0] == 'v' else set()
        r.vw |= r.D; r.vr |= r.A | r.B | r.C
    elif mn.startswith('v_permlane'):
        r.kind = 'perm'
        for tk in toks[:2]:
            rd(tk); wr(tk)
    elif mn.startswith('v_'):
        r.kind = 'trans' if mn in TRANS else 'valu'
        wr(toks[0])
        for tk in toks[1:]:
            rd(tk)
        if mn.startswith('v_cndmask_b32_e32') or (mn == 'v_cndmask_b32' and len(toks) == 3):
            r.sr.add('vcc')
        if mn in ('v_fmac_f32', 'v_fmac_f32_e32'):
            rd(toks[0])
        if mn.startswith(('v_readfirstlane', 'v_readlane')):
            r.kind = 'readlane'
        if 'row_' in t or '_dpp' in mn:
            r.kind = 'dpp'
    elif mn.startswith(('buffer_load', 'global_load')):
        r.kind = 'vmem'
        wr(toks[0])
        for tk in toks[1:]:
            rd(tk)
    elif mn.startswith(('buffer_store', 'global_store')):
        r.kind = 'vmem'
        for tk in toks:
            rd(tk)
        if 'x4' in mn or 'x3' in mn:
            x = _regs(toks[0]) if mn.startswith('buffer') else _regs(toks[1])
            r.storedata = x[1]
    elif mn.startswith('ds_read'):
        r.kind = 'ds'
        wr(toks[0])
        for tk in toks[1:]:
            rd(tk)
    elif mn.startswith('ds_write'):
        r.kind = 'ds'
        for tk in toks:
            rd(tk)
    else:
        r.kind = 'salu'
    return r

def nop_states(text):
    t = text.split(';')[0].strip()
    m = re.fullmatch(r's_nop\s+(\d+)', t)
    if m:
        return int(m.group(1)) + 1
    return 1

class Asm:
    def __init__(self):
        self.lines = []
        self.hist = []
        self.nops_inserted = 0

    def need(self, I):
        need = 0
        for R, d in self.hist:
            n = 0
            if R.kind in ('valu', 'trans', 'perm', 'readlane', 'dpp'):
                if I.kind == 'mfma' and (R.vw & I.vr): n = max(n, 2)
                if I.kind == 'dpp' and (R.vw & I.vr): n = max(n, 2)
                if I.kind == 'perm' and (R.vw & I.vr): n = max(n, 2)
                if R.kind == 'trans' and I.kind in ('valu', 'perm', 'readlane', 'dpp') and (R.vw & I.vr): n = max(n, 1)
                if I.kind == 'readlane' and (R.vw & I.vr): n = max(n, 1)
                if (R.sw & I.sr):
                    if I.kind in ('valu', 'trans', 'perm', 'dpp'): n = max(n, 2)
                    if I.kind == 'readlane': n = max(n, 4)
                    if I.kind == 'vmem': n = max(n, 5)
            if R.kind == 'mfma':
                D = R.D
                if I.kind == 'mfma':
                    if I.C and (I.C & D):
                        if I.C == D: pass
                        else: n = max(n, 10)
                    if (I.A | I.B) & D: n = max(n, 12)
                elif I.kind in ('valu', 'trans', 'perm', 'readlane', 'dpp'):
                    if D & (I.vr | I.vw): n = max(n, 12)
                    if R.C & I.vw: n = max(n, 7)
                elif I.kind in ('vmem', 'ds'):
                    if D & (I.vr | I.vw): n = max(n, 12)
            if R.storedata and I.kind in ('valu', 'trans', 'perm', 'dpp') and (R.storedata & I.vw):
                n = max(n, 2)
            if n - d > need:
                need = n - d
        return need

    def _age(self, states):
        nh = []
        for R, d in self.hist:
            d += states
            if d < 24:
                nh.append((R, d))
        self.hist = nh

    def raw(self, text):
        self.lines.append(text)

    def ins(self, text):
        I = parse(text)
        if I.kind != 'salu' or True:
            n = self.need(I)
            while n > 0:
                k = min(n, 16)
                self.lines.append(f"    s_nop {k-1}")
                self._age(k)
                self.nops_inserted += k
                n -= k
        self.lines.append("    " + text)
        st = nop_states(text)
        self._age(st)
        self.hist.append((I, 0))
        return I

    def many(self, texts):
        for t in texts:
            self.ins(t)

    def flush_hist(self):
        self.hist = []

    def text(self):
        return "\n".join(self.lines) + "\n"
```

```python
import sys, struct, os
from asmgen import Asm

PROF = int(os.environ.get("PROF", "0"))
EXACT = int(os.environ.get("EXACT", "0"))
FORCE_FB = int(os.environ.get("FORCE_FB", "0"))

NAME = "standalone__attention_interact_autoint__recsys"
NWAVES = 4
NWG = 4096 // (2 * NWAVES)
NTILES = 13
CSCALE = 1.4426950408889634 / (8 ** 0.5)
def f32bits(x): return struct.unpack("<I", struct.pack("<f", x))[0]

a = Asm()
I = a.ins

vTID = 0
vI, vHF, vLaneK, vLaneK3, vLaneO, vOnes, vMH0, vMH1 = 1, 2, 3, 4, 5, 6, 7, 8
vFQR = 12
vNU = [[16, 17], [18, 19]]
vKF = [20, 36]
vVF = [52, 80]
vXA = 108
vXB = 124
vC = 140
vO = 156
vDQ = 172
vE = 188
vQop = 192
vP = 196
vT = 204
vX16 = 220
vFKQ = 236
vFV = 240
vMaxK, vMaxQ, vSSK, vSSQ = 244, 245, 246, 247
NVGPR = 248
T = lambda k: vT + k

sKARG = 48
sSRDe, sSRDo, sSRDq, sSRDk, sSRDv, sSRDr = 4, 8, 12, 16, 20, 24
sWB, sWave, sT0, sT1, sFB = 28, 29, 30, 31, 32
sMlo16, sMhi16 = 34, 36
sFlag = 38
sFlagN = 40
sMrow8 = 42
sMhf0 = 44
sEo, sOo = 46, 47

hdr = f"""; Kernarg layout for this problem (64 bytes, ptrs only, base s[0:1]):
; @launch grid=({NWG},1,1) block=({64*NWAVES},1,1) lds=0
.amdgcn_target "amdgcn-amd-amdhsa--gfx950"
.text
.globl {NAME}_kernel
.p2align 8
.type {NAME}_kernel,@function
{NAME}_kernel:"""
a.raw(hdr)

def srd(s, ptr, nbytes):
    I(f"s_mov_b32 s{s}, s{ptr}")
    I(f"s_and_b32 s{s+1}, s{ptr+1}, 0xffff")
    I(f"s_mov_b32 s{s+2}, {nbytes}")
    I(f"s_mov_b32 s{s+3}, 0x00020000")

def mfma(d, A, B, C):
    cs = "0" if C is None else f"v[{C}:{C+15}]"
    I(f"v_mfma_f32_32x32x16_bf16 v[{d}:{d+15}], v[{A}:{A+3}], v[{B}:{B+3}], {cs}")

I(f"s_cmp_ge_u32 s2, {NWG}")
I("s_cbranch_scc1 L_end")
if PROF:
    I("s_memtime s[64:65]")
    I("s_memrealtime s[70:71]")
I(f"s_load_dwordx8 s[{sKARG}:{sKARG+7}], s[0:1], 0")
I(f"s_load_dwordx4 s[{sKARG+8}:{sKARG+11}], s[0:1], 32")
I(f"v_and_b32 v{vI}, 31, v{vTID}")
I(f"v_bfe_u32 v{vHF}, v{vTID}, 5, 1")
I(f"v_lshrrev_b32 v{T(0)}, 6, v{vTID}")
I("s_nop 0")
I(f"v_readfirstlane_b32 s{sWave}, v{T(0)}")
I(f"v_lshlrev_b32 v{T(1)}, 4, v{vHF}")
I(f"v_lshl_add_u32 v{vLaneK}, v{vI}, 5, v{T(1)}")
I(f"v_and_b32 v{T(0)}, 3, v{vI}")
I(f"v_lshl_add_u32 v{vLaneK3}, v{T(0)}, 5, v{T(1)}")
I(f"v_lshlrev_b32 v{T(1)}, 3, v{vHF}")
I(f"v_lshl_add_u32 v{vLaneO}, v{vI}, 5, v{T(1)}")
I(f"v_and_b32 v{T(0)}, 27, v{vI}")
I(f"v_mov_b32 v{T(1)}, 0x3f803f80")
I(f"v_cmp_eq_u32 vcc, 16, v{T(0)}")
I(f"v_cndmask_b32_e64 v{vOnes}, 0, v{T(1)}, vcc")
I(f"v_add_u32 v{vMH0}, -1, v{vHF}")
I(f"v_sub_u32 v{vMH1}, 0, v{vHF}")
I(f"s_mov_b32 s{sMlo16}, 0x0000ffff")
I(f"s_mov_b32 s{sMlo16+1}, 0x0000ffff")
I(f"s_mov_b32 s{sMhi16}, 0xffff0000")
I(f"s_mov_b32 s{sMhi16+1}, 0xffff0000")
I(f"s_mov_b32 s{sMrow8}, 0x000000ff")
I(f"s_mov_b32 s{sMrow8+1}, 0x000000ff")
I(f"s_mov_b32 s{sMhf0}, -1")
I(f"s_mov_b32 s{sMhf0+1}, 0")
I(f"s_mov_b32 s{sFB}, 0")
I(f"s_lshl_b32 s{sT0}, s2, 2")
I(f"s_add_u32 s{sT0}, s{sT0}, s{sWave}")
I(f"s_mul_i32 s{sWB}, s{sT0}, 6400")
vBa, vBb, vScA, vScB = T(2), T(3), T(4), T(5)
I(f"v_bfe_u32 v{vBa}, v{vI}, 2, 1")
I(f"v_lshlrev_b32 v{vBa}, 8, v{vBa}")
I(f"v_and_b32 v{T(0)}, 3, v{vI}")
I(f"v_bfe_u32 v{T(1)}, v{vI}, 3, 1")
I(f"v_lshl_add_u32 v{T(0)}, v{T(1)}, 2, v{T(0)}")
I(f"v_lshl_add_u32 v{vBa}, v{T(0)}, 1, v{vBa}")
I(f"v_lshl_add_u32 v{vBa}, v{vHF}, 7, v{vBa}")
I(f"v_and_b32 v{T(0)}, 7, v{vI}")
I(f"v_lshl_add_u32 v{T(0)}, v{T(1)}, 3, v{T(0)}")
I(f"v_lshlrev_b32 v{vBb}, 1, v{T(0)}")
I(f"v_lshl_add_u32 v{vBb}, v{vHF}, 8, v{vBb}")
vBv = T(6)
I(f"v_and_b32 v{T(0)}, 7, v{vI}")
I(f"v_lshlrev_b32 v{vBv}, 8, v{T(1)}")
I(f"v_lshl_add_u32 v{vBv}, v{T(0)}, 1, v{vBv}")
I(f"v_lshl_add_u32 v{vBv}, v{vHF}, 7, v{vBv}")
I(f"v_cmp_gt_u32 vcc, 16, v{vI}")
I(f"v_mov_b32 v{T(0)}, {f32bits(CSCALE):#x}")
I(f"v_cndmask_b32_e64 v{vScA}, v{T(0)}, 1.0, vcc")
I(f"v_cndmask_b32_e64 v{vScB}, 1.0, v{T(0)}, vcc")
I(f"v_cndmask_b32_e64 v{T(7)}, 0, 1.0, vcc")
I("s_waitcnt lgkmcnt(0)")
srd(sSRDe, sKARG + 0, 4096 * 3200)
srd(sSRDq, sKARG + 2, 512)
srd(sSRDk, sKARG + 4, 512)
srd(sSRDv, sKARG + 6, 512)
srd(sSRDr, sKARG + 8, 512)
srd(sSRDo, sKARG + 10, 4096 * 3200)

WT = vC
for m in range(24):
    I(f"v_mov_b32 v{WT+m}, 0")
def wloads(tmp, srdreg, vbase, stride, mask):
    I(f"s_mov_b64 exec, s[{mask}:{mask+1}]" if mask is not None else "s_mov_b64 exec, -1")
    for m in range(8):
        I(f"buffer_load_ushort v{tmp+m}, v{vbase}, s[{srdreg}:{srdreg+3}], 0 offen offset:{stride*m}")
wloads(WT, sSRDk, vBa, 16, sMlo16)
wloads(WT, sSRDq, vBa, 16, sMhi16)
wloads(WT + 8, sSRDq, vBa, 16, sMlo16)
wloads(WT + 8, sSRDr, vBb, 32, sMhi16)
wloads(WT + 16, sSRDv, vBv, 16, sMlo16)
I("s_mov_b64 exec, -1")
EA = vXA
for n in range(2):
    for t in range(4):
        lane = vLaneK3 if t == 3 else vLaneK
        I(f"s_add_u32 s{sT0}, s{sWB}, {n*3200}")
        I(f"buffer_load_dwordx4 v[{EA+16*n+4*t}:{EA+16*n+4*t+3}], v{lane}, s[{sSRDe}:{sSRDe+3}], s{sT0} offen offset:{t*1024}")
I("s_waitcnt vmcnt(8)")
for m in range(8):
    I(f"v_lshlrev_b32 v{WT+m}, 16, v{WT+m}")
    I(f"v_lshlrev_b32 v{WT+8+m}, 16, v{WT+8+m}")
    I(f"v_lshlrev_b32 v{WT+16+m}, 16, v{WT+16+m}")
    I(f"v_mul_f32 v{WT+m}, v{vScA}, v{WT+m}")
    I(f"v_mul_f32 v{WT+8+m}, v{vScB}, v{WT+8+m}")
    I(f"v_mul_f32 v{WT+16+m}, v{T(7)}, v{WT+16+m}")
for q in range(4):
    I(f"v_cvt_pk_bf16_f32 v{vFKQ+q}, v{WT+2*q}, v{WT+2*q+1}")
    I(f"v_cvt_pk_bf16_f32 v{vFQR+q}, v{WT+8+2*q}, v{WT+8+2*q+1}")
    I(f"v_cvt_pk_bf16_f32 v{vFV+q}, v{WT+16+2*q}, v{WT+16+2*q+1}")

def tinfo(c):
    phi0 = 32 * c
    p0 = phi0 // 100
    jb = 100 * (p0 + 1) - phi0
    return p0, jb, jb < 32

def issue_rows(c):
    p0, jb, sp = tinfo(c)
    phi0 = 32 * c
    rowbase = phi0 - 100 * ((p0 + 1) >> 1)
    va = vLaneK
    soff = f"s{sEo}"
    jump = sp and p0 % 2 == 0
    if not jump:
        I(f"s_add_u32 s{sEo}, s{sWB}, {rowbase*32}")
    if sp:
        I(f"v_cmp_le_u32 s[{sFlagN}:{sFlagN+1}], {jb}, v{vI}")
        if jump:
            I(f"v_mov_b32 v{T(8)}, {rowbase*32}")
            I(f"v_mov_b32 v{T(9)}, {rowbase*32-3200}")
            I(f"v_cndmask_b32_e64 v{T(8)}, v{T(8)}, v{T(9)}, s[{sFlagN}:{sFlagN+1}]")
            I(f"v_add_u32 v{T(8)}, v{vLaneK}, v{T(8)}")
            va = T(8)
            soff = f"s{sWB}"
    I(f"buffer_load_dwordx4 v[{vE}:{vE+3}], v{va}, s[{sSRDe}:{sSRDe+3}], {soff} offen")

issue_rows(0)

DKQ = [vC, vDQ]; DV = [vO, vX16]
def postA(idx):
    b = idx >> 2; t = idx & 3
    dk = DKQ[idx & 1]; dv = DV[idx & 1]
    kf = vKF[b] + 4 * t
    for q in range(4):
        I(f"v_cvt_pk_bf16_f32 v{kf+q}, v{dk+2*q}, v{dk+2*q+1}")
    I(f"v_mul_f32 v{vSSK}, v{dk}, v{dk}")
    I(f"v_mul_f32 v{vSSQ}, v{dk+8}, v{dk+8}")
    for r in range(1, 8):
        I(f"v_fmac_f32 v{vSSK}, v{dk+r}, v{dk+r}")
        I(f"v_fmac_f32 v{vSSQ}, v{dk+8+r}, v{dk+8+r}")
    if t == 0:
        I(f"v_mov_b32 v{vMaxK}, v{vSSK}")
        I(f"v_mov_b32 v{vMaxQ}, v{vSSQ}")
    else:
        I(f"v_max_f32 v{vMaxK}, v{vMaxK}, v{vSSK}")
        I(f"v_max_f32 v{vMaxQ}, v{vMaxQ}, v{vSSQ}")
    vf = vVF[b] + 8 * t
    if t < 3:
        for q in range(8):
            I(f"v_cvt_pk_bf16_f32 v{vf+q}, v{dv+2*q}, v{dv+2*q+1}")
        for q in range(8):
            I(f"v_or_b32 v{vf+q}, v{vf+q}, v{vOnes}")
    else:
        for q in range(2):
            I(f"v_cvt_pk_bf16_f32 v{vf+q}, v{dv+2*q}, v{dv+2*q+1}")
        for q in range(2):
            I(f"v_or_b32 v{vf+q}, v{vf+q}, v{vOnes}")
            I(f"v_and_b32 v{vf+q}, v{vf+q}, v{vMH0}")
        I(f"v_mov_b32 v{vf+2}, 0")
        I(f"v_mov_b32 v{vf+3}, 0")
        for x in (vMaxK, vMaxQ):
            for rot in (8, 4, 2, 1):
                I(f"v_max_f32_dpp v{x}, v{x}, v{x} row_ror:{rot} row_mask:0xf bank_mask:0xf")
            I(f"v_mov_b32 v{T(9)}, v{x}")
            I(f"v_permlane16_swap_b32 v{x}, v{T(9)}")
            I(f"v_max_f32 v{x}, v{x}, v{T(9)}")
        I(f"v_mul_f32 v{vMaxK}, v{vMaxK}, v{vMaxQ}")
        I(f"v_sqrt_f32 v{vMaxK}, v{vMaxK}")
        I(f"v_mul_f32 v{vMaxK}, -1.015625, v{vMaxK}") if False else None
        I(f"v_mov_b32 v{T(9)}, {f32bits(-1.015625):#x}")
        I(f"v_mul_f32 v{vMaxK}, v{T(9)}, v{vMaxK}")
        I(f"v_mov_b32 v{vNU[b][1]}, v{vMaxK}")
        I(f"v_mov_b32 v{vNU[b][0]}, v{vMaxK}")
        I(f"v_permlane32_swap_b32 v{vNU[b][0]}, v{vNU[b][1]}")

for idx in range(8):
    e = EA + 4 * idx
    I(f"s_waitcnt vmcnt({8 - idx})")
    mfma(DKQ[idx & 1], vFKQ, e, None)
    mfma(DV[idx & 1], e, vFV, None)
    if idx > 0:
        postA(idx - 1)
postA(7)
if PROF:
    I("s_memtime s[66:67]")

fallbacks = []

def pass1(c, kset):
    X1 = [vXA, vXB, vC, vO]
    for t in range(4):
        mfma(X1[t], kset + 4 * t, vQop, None)
    vals = []
    for t in range(4):
        vals += [X1[t] + r for r in range(16 if t < 3 else 4)]
    accs = [T(10), T(11)]; started = [False, False]; k = 0; ch = 0
    while k < len(vals):
        acc = accs[ch]
        if not started[ch]:
            I(f"v_max3_f32 v{acc}, v{vals[k]}, v{vals[k+1]}, v{vals[k+2]}"); k += 3; started[ch] = True
        elif k + 1 < len(vals):
            I(f"v_max3_f32 v{acc}, v{acc}, v{vals[k]}, v{vals[k+1]}"); k += 2
        else:
            I(f"v_max_f32 v{acc}, v{acc}, v{vals[k]}"); k += 1
        ch ^= 1
    I(f"v_max_f32 v{accs[0]}, v{accs[0]}, v{accs[1]}")
    I(f"v_mov_b32 v{accs[1]}, v{accs[0]}")
    I(f"v_permlane32_swap_b32 v{accs[0]}, v{accs[1]}")
    I(f"v_max_f32 v{accs[0]}, v{accs[0]}, v{accs[1]}")
    for r in range(16):
        I(f"v_mul_f32 v{vC+r}, -1.0, v{accs[0]}")

prevC = None
for c in range(NTILES):
    p0, jb, sp = tinfo(c)
    h0 = p0 & 1
    b0 = p0 >> 1
    p1 = p0 + 1
    last = (c == NTILES - 1)
    kset = vKF[0] if c <= 6 else vKF[1]
    vset = vVF[0] if c <= 6 else vVF[1]
    if c == 6:
        for r in range(16):
            I(f"v_cndmask_b32_e64 v{vKF[0]+r}, v{vKF[0]+r}, v{vKF[1]+r}, s[{sMhf0}:{sMhf0+1}]")
        for r in range(28):
            I(f"v_cndmask_b32_e64 v{vVF[0]+r}, v{vVF[0]+r}, v{vVF[1]+r}, s[{sMrow8}:{sMrow8+1}]")
    if sp:
        I(f"s_mov_b64 s[{sFlag}:{sFlag+1}], s[{sFlagN}:{sFlagN+1}]")
    I("s_waitcnt vmcnt(0)" if c == 0 else "s_waitcnt vmcnt(1)")
    mfma(vDQ, vFQR, vE, None)
    if not last:
        issue_rows(c + 1)
    if not EXACT:
        key = (p0, sp)
        if sp or prevC != key:
            if sp:
                q1 = vNU[min(p1 >> 1, 1)][p1 & 1] if p1 < 4 else vNU[b0][h0]
                I(f"v_cndmask_b32_e64 v{T(12)}, v{vNU[b0][h0]}, v{q1}, s[{sFlag}:{sFlag+1}]")
                src = T(12)
            else:
                src = vNU[b0][h0]
            for r in range(16):
                I(f"v_mov_b32 v{vC+r}, v{src}")
        prevC = key
    for q in range(4):
        I(f"v_cvt_pk_bf16_f32 v{vQop+q}, v{vDQ+2*q}, v{vDQ+2*q+1}")
    if sp:
        I(f"v_cndmask_b32_e64 v{T(13)}, v{[vMH0, vMH1][h0]}, v{[vMH0, vMH1][1-h0]}, s[{sFlag}:{sFlag+1}]")
        qm = T(13)
    else:
        qm = [vMH0, vMH1][h0]
    for q in range(4):
        I(f"v_and_b32 v{vQop+q}, v{vQop+q}, v{qm}")
    if EXACT:
        pass1(c, kset)
    a.raw(f"L_p2_{c}:")
    mfma(vXA, kset, vQop, vC)
    mfma(vXB, kset + 4, vQop, vC)
    first_pv = True
    XB2 = [vXA, vXB]
    for t in range(4):
        X = XB2[t & 1]
        nreg = 16 if t < 3 else 4
        for r in range(nreg):
            I(f"v_exp_f32 v{X+r}, v{X+r}")
        for q in range(nreg // 2):
            I(f"v_cvt_pk_bf16_f32 v{vP+q}, v{X+2*q}, v{X+2*q+1}")
        if t == 3:
            I(f"v_mov_b32 v{vP+2}, 0")
            I(f"v_mov_b32 v{vP+3}, 0")
        if t + 2 < 4:
            mfma(X, kset + 4 * (t + 2), vQop, vC)
        for u in range(2):
            if t == 3 and u == 1: break
            mfma(vO, vset + 8 * t + 4 * u, vP + 4 * u, None if first_pv else vO)
            first_pv = False
    if not EXACT:
        thr = 0x7f000000 if FORCE_FB else 0x21800000
        I(f"v_mov_b32 v{T(12)}, {thr:#x}")
        I(f"v_cmp_nle_f32 vcc, v{T(12)}, v{vO+8}")
        I(f"s_cbranch_vccnz L_fb_{c}")
        a.raw(f"L_ret_{c}:")
        I(f"s_mov_b32 s{sFB}, 0")
        fallbacks.append((c, kset))
    I(f"v_rcp_f32 v{T(12)}, v{vO+8}")
    if sp:
        for m in range(4):
            lo, hi = (vO + m, vO + 4 + m) if h0 == 0 else (vO + 4 + m, vO + m)
            I(f"v_cndmask_b32_e64 v{T(m)}, v{lo}, v{hi}, s[{sFlag}:{sFlag+1}]")
        for m in range(4):
            lo, hi = (vDQ + 8 + m, vDQ + 12 + m) if h0 == 0 else (vDQ + 12 + m, vDQ + 8 + m)
            I(f"v_cndmask_b32_e64 v{T(4+m)}, v{lo}, v{hi}, s[{sFlag}:{sFlag+1}]")
        osrc = [T(m) for m in range(4)]; rsrc = [T(4 + m) for m in range(4)]
        rowjump = 3200 if p0 % 2 == 0 else 0
        rb32 = (32 * c - 100 * ((p0 + 1) >> 1)) * 32
        delta = ((1 - h0) - h0) * 16 - rowjump
        if last:
            delta = 0x4000000
        I(f"v_mov_b32 v{T(13)}, {rb32}")
        I(f"v_mov_b32 v{T(14)}, {(rb32 + delta) & 0xffffffff:#x}")
        I(f"v_cndmask_b32_e64 v{T(13)}, v{T(13)}, v{T(14)}, s[{sFlag}:{sFlag+1}]")
        I(f"v_add_u32 v{T(13)}, v{vLaneO}, v{T(13)}")
        oaddr = T(13); ooff = 16 * h0
    else:
        osrc = [vO + 4 * h0 + m for m in range(4)]; rsrc = [vDQ + 8 + 4 * h0 + m for m in range(4)]
        oaddr = vLaneO; ooff = 16 * h0
    for m in range(4):
        I(f"v_fma_f32 v{T(m)}, v{osrc[m]}, v{T(12)}, v{rsrc[m]}")
    I(f"v_cvt_pk_bf16_f32 v{T(0)}, v{T(0)}, v{T(1)}")
    I(f"v_cvt_pk_bf16_f32 v{T(1)}, v{T(2)}, v{T(3)}")
    I(f"v_pk_max_i16 v{T(0)}, v{T(0)}, 0")
    I(f"v_pk_max_i16 v{T(1)}, v{T(1)}, 0")
    rowbase = 32 * c - 100 * ((p0 + 1) >> 1)
    if sp:
        osoff = f"s{sWB}"
    else:
        I(f"s_add_u32 s{sOo}, s{sWB}, {rowbase*32}")
        osoff = f"s{sOo}"
    I(f"buffer_store_dwordx2 v[{T(0)}:{T(1)}], v{oaddr}, s[{sSRDo}:{sSRDo+3}], {osoff} offen offset:{ooff}")

if PROF:
    I("s_memtime s[68:69]")
    I("s_memrealtime s[72:73]")
    I("s_load_dwordx2 s[74:75], s[0:1], 56")
    I("s_waitcnt lgkmcnt(0)")
    I("s_sub_u32 s66, s66, s64")
    I("s_sub_u32 s68, s68, s64")
    I("s_sub_u32 s72, s72, s70")
    I(f"s_lshl_b32 s76, s2, 2")
    I(f"s_add_u32 s76, s76, s{sWave}")
    I("s_lshl_b32 s76, s76, 4")
    I("s_add_u32 s74, s74, s76")
    I("s_addc_u32 s75, s75, 0")
    I("v_mov_b32 v1, 0")
    I("v_mov_b32 v2, s66")
    I("v_mov_b32 v3, s68")
    I("v_mov_b32 v4, s72")
    I("v_mov_b32 v5, 0")
    I("global_store_dwordx4 v1, v[2:5], s[74:75]")
    I("s_waitcnt vmcnt(0)")
a.raw("L_end:")
I("s_endpgm")

for c, kset in fallbacks:
    a.raw(f"L_fb_{c}:")
    a.flush_hist()
    I("s_nop 15")
    I(f"s_cmp_lg_u32 s{sFB}, 0")
    I(f"s_cbranch_scc1 L_ret_{c}")
    I(f"s_mov_b32 s{sFB}, 1")
    pass1(c, kset)
    I("s_nop 3")
    I(f"s_branch L_p2_{c}")
    a.flush_hist()

tailtxt = f""".section .rodata,"a"
.p2align 6
.amdhsa_kernel {NAME}_kernel
  .amdhsa_next_free_vgpr {NVGPR}
  .amdhsa_next_free_sgpr 102
  .amdhsa_accum_offset {((NVGPR+3)//4)*4}
  .amdhsa_group_segment_fixed_size 0
  .amdhsa_kernarg_size 64
  .amdhsa_user_sgpr_count 2
  .amdhsa_user_sgpr_kernarg_segment_ptr 1
  .amdhsa_system_sgpr_workgroup_id_x 1
.end_amdhsa_kernel
"""
out = sys.argv[1] if len(sys.argv) > 1 else "cdna_kernels/" + NAME + ".s"
open(out, "w").write(a.text() + tailtxt)
print("wrote", out, "lines", len(a.lines), "nops", a.nops_inserted)
```
